```python
import torch

def _softmax(x, axis=-1):
    return torch.softmax(x, dim=axis)
def _gelu(x):
    return torch.nn.functional.gelu(x, approximate="tanh")
def _silu(x):
    return torch.nn.functional.silu(x)
def _sigmoid(x):
    return torch.sigmoid(x)
def _layernorm(x, axis=-1, eps=1e-5):
    m = x.mean(dim=axis, keepdim=True)
    v = x.var(dim=axis, keepdim=True, unbiased=False)
    return (x - m) / torch.sqrt(v + eps)
def _scatter_add(tgt, idx, src, axis=0):
    return tgt.clone().index_add_(axis, idx, src)
def _segment_sum(src, seg, n):
    out = torch.zeros((n,) + src.shape[1:], dtype=src.dtype)
    return out.index_add_(0, seg, src)
def _pad(x, pw):
    flat = tuple(v for pair in reversed(pw) for v in pair)
    return torch.nn.functional.pad(x, flat)

kernel_name = 'standalone__kv_cache_quant_int4_int2_kv_with_per_channel_or_per_token_scales__decode'

def setup_inputs():

    _w = (lambda a: (lambda t: t.to(torch.bfloat16) if t.is_floating_point() else t)(torch.as_tensor(a)))
    B = 1
    Sq = 1
    Skv = 65536
    Hq = 32
    Hkv = 4
    Dh = 128
    bits = 2
    G = 128
    if G <= 0 or G >= Skv:
        G = max(1, Skv // 2)
    Skv = (Skv // G) * G
    ngk = Skv // G
    qmax = (1 << bits) - 1
    return {
        "q": _w((lambda *s: torch.randn(*s, dtype=torch.bfloat16) * 3.2)(B, Hq, Sq, Dh)),
        "qk": _w(torch.randint(0, qmax + 1, (B, Hkv, Skv, Dh)).to(torch.int32)),
        "qv": _w(torch.randint(0, qmax + 1, (B, Hkv, Skv, Dh)).to(torch.int32)),
        "k_scales": _w(torch.abs((lambda *s: torch.randn(*s, dtype=torch.bfloat16) * 3.2)(B, Hkv, ngk, Dh)) * 0.05 + 0.02),
        "k_zeros": _w((lambda *s: torch.randn(*s, dtype=torch.bfloat16) * 3.2)(B, Hkv, ngk, Dh) + float(qmax) / 2.0),
        "v_scales": _w(torch.abs((lambda *s: torch.randn(*s, dtype=torch.bfloat16) * 0.05)(B, Hkv, Skv, 1)) * 0.05 + 0.02),
        "v_zeros": _w((lambda *s: torch.randn(*s, dtype=torch.bfloat16) * 0.05)(B, Hkv, Skv, 1) + float(qmax) / 2.0),
    }

def reference(q, qk, qv, k_scales, k_zeros, v_scales, v_zeros):
    B, Hq, Sq, Dh = q.shape
    Hkv, Skv = qk.shape[1], qk.shape[2]
    ngk = k_scales.shape[2]
    G = Skv // ngk
    ks = (lambda x, n, axis: torch.repeat_interleave(x, n, dim=axis))(k_scales, G, axis=2)
    kz = (lambda x, n, axis: torch.repeat_interleave(x, n, dim=axis))(k_zeros, G, axis=2)
    k = ((lambda x, dt: x.to(dt))(qk, q.dtype) - kz) * ks
    v = ((lambda x, dt: x.to(dt))(qv, q.dtype) - v_zeros) * v_scales
    rep = Hq // Hkv
    if rep > 1:
        k = (lambda x, n, axis: torch.repeat_interleave(x, n, dim=axis))(k, rep, axis=1)
        v = (lambda x, n, axis: torch.repeat_interleave(x, n, dim=axis))(v, rep, axis=1)
    scale = float(Dh) ** -0.5
    logits = torch.einsum("bhqd,bhkd->bhqk", q, k) * scale
    p = _softmax(logits, axis=-1)
    o = torch.einsum("bhqk,bhkd->bhqd", p, v)
    return o
```

```python
import sys, math
NAME = "standalone__kv_cache_quant_int4_int2_kv_with_per_channel_or_per_token_scales__decode"
HEADER = """; Kernarg layout (80 bytes, ptrs only, base s[0:1]):
"""
LOG2E = 0x3fb8aa3b
SCALE = 0x3db504f3

class Gen:
    def __init__(self): self.o = []
    def __call__(self, s): self.o.append("    " + s)
    def label(self, s): self.o.append(s + ":")
    def raw(self, s): self.o.append(s)
    def text(self): return "\n".join(self.o) + "\n"

def kd(A, name, vgpr, sgpr=96):
    A.raw('.section .rodata,"a"'); A.raw(".p2align 6"); A.raw(f".amdhsa_kernel {name}")
    A.raw(f"  .amdhsa_next_free_vgpr {vgpr}"); A.raw(f"  .amdhsa_next_free_sgpr {sgpr}"); A.raw(f"  .amdhsa_accum_offset {min(256,(vgpr+3)//4*4)}")
    A.raw("  .amdhsa_group_segment_fixed_size 0"); A.raw("  .amdhsa_kernarg_size 80"); A.raw("  .amdhsa_user_sgpr_count 2")
    A.raw("  .amdhsa_user_sgpr_kernarg_segment_ptr 1"); A.raw("  .amdhsa_system_sgpr_workgroup_id_x 1")
    A.raw("  .amdhsa_float_denorm_mode_32 3")
    A.raw(".end_amdhsa_kernel")

def srd(A, d, lo, n):
    A(f"s_mov_b32 s{d}, s{lo}"); A(f"s_mov_b32 s{d+1}, s{lo+1}"); A(f"s_mov_b32 s{d+2}, {hex(n)}"); A(f"s_mov_b32 s{d+3}, 0x20000")

def gen(gbits="B0 B1 B2 B3 B4 B5 T0 T1 T2", flags="nt", pflags="nt", usepk=True, stamp=False, vgpr=256):
    gb = gbits.split(); assert len(gb) == 9
    gp = {n: i for i, n in enumerate(gb)}
    assert gp["T2"] == gp["T1"] + 1
    c0g = 1 << gp["T0"]; c1g = 1 << gp["T1"]
    W = 8
    L_KST = 0
    L_LG = 65536
    L_KP = L_LG + 32768
    L_VP = L_KP + 8192
    L_ML = L_VP + 8192
    LDS = L_ML + 512
    RSTR = 528
    RW = 8 * RSTR
    A = Gen()
    K1 = NAME + "_kernel"; K2 = NAME + "_comb_kernel"
    A.raw(HEADER.rstrip())
    A.raw(f"; @launch kernel={K1} grid=(256,1,1) block=(512,1,1) lds={LDS}")
    A.raw(f"; @launch kernel={K2} grid=(128,1,1) block=(64,1,1) lds=0")
    A.raw('.amdgcn_target "amdgcn-amd-amdhsa--gfx950"')
    A.raw(".text"); A.raw(f".globl {K1}"); A.raw(".p2align 8"); A.raw(f".type {K1},@function"); A.label(K1)
    VOFF = 1; WA = 2; RA = 10; KPA = 14; VPA = 15; LGA = 16; VM = 18; VL = 19; VX = 17
    Q = 20; PRM = 36; ACC = 68; OPN = 100; SAC = 132; T = 140; RING = 156
    A("s_cmp_ge_u32 s2, 256"); A("s_cbranch_scc1 L_done")
    if stamp: A("s_memrealtime s[90:91]")
    A("s_load_dwordx4 s[16:19], s[0:1], 8")
    A("s_load_dwordx8 s[20:27], s[0:1], 24")
    A("s_load_dwordx2 s[28:29], s[0:1], 0")
    A("s_load_dwordx2 s[30:31], s[0:1], 72")
    A("v_lshrrev_b32 v2, 6, v0")
    A("v_and_b32 v0, 63, v0")
    A("v_readfirstlane_b32 s3, v2")
    A("v_lshrrev_b32 v3, 4, v0")
    A("v_and_b32 v4, 15, v0")
    A("v_lshlrev_b32 v1, 9, v3")
    A("v_lshl_add_u32 v1, v4, 4, v1")
    A("s_lshr_b32 s4, s2, 6")
    A("s_mov_b32 s5, 0")
    for i in range(6):
        A(f"s_bitcmp1_b32 s2, {i}"); A(f"s_cselect_b32 s6, {1 << gp[f'B{i}']}, 0"); A("s_or_b32 s5, s5, s6")
    A("s_lshl_b32 s7, s4, 25"); A("s_lshl_b32 s6, s5, 16"); A("s_add_u32 s7, s7, s6"); A("s_lshl_b32 s6, s3, 13"); A("s_add_u32 s7, s7, s6")
    A("s_mov_b32 s40, s7"); A("s_add_u32 s41, s7, 4096"); A(f"s_add_u32 s42, s7, {c0g << 16}"); A(f"s_add_u32 s43, s7, {(c0g << 16) + 4096}")
    A("s_lshl_b32 s8, s4, 17")
    A("s_and_b32 s9, s3, 1"); A(f"s_mul_i32 s9, s9, {c0g}"); A("s_lshr_b32 s10, s3, 1"); A(f"s_mul_i32 s10, s10, {c1g}")
    A("s_add_u32 s9, s9, s10"); A("s_add_u32 s9, s9, s5"); A("s_lshl_b32 s9, s9, 8"); A("s_add_u32 s9, s9, s8")
    A("v_lshlrev_b32 v5, 2, v0")
    A("v_lshrrev_b32 v6, 3, v0"); A("v_and_b32 v7, 1, v6"); A("v_lshrrev_b32 v6, 1, v6")
    A(f"v_lshlrev_b32 v7, {gp['T0'] + 8}, v7"); A(f"v_lshl_add_u32 v6, v6, {gp['T1'] + 8}, v7")
    A("v_and_b32 v7, 7, v0"); A("v_lshl_add_u32 v6, v7, 2, v6")
    A("s_lshl_b32 s10, s5, 8"); A("s_add_u32 s10, s10, s8"); A("s_lshl_b32 s11, s3, 5"); A("s_add_u32 s10, s10, s11")
    A("v_and_b32 v7, 7, v0"); A("v_lshlrev_b32 v7, 8, v7"); A("v_lshl_add_u32 v7, v3, 4, v7")
    A("s_lshl_b32 s11, s4, 11")
    A("s_waitcnt lgkmcnt(0)")
    srd(A, 12, 16, 1 << 27)
    srd(A, 44, 20, 1 << 19); srd(A, 48, 22, 1 << 19); srd(A, 52, 24, 1 << 19); srd(A, 56, 26, 1 << 19)
    srd(A, 60, 28, 8192)
    A(f"buffer_load_dword v{T+0}, v5, s[48:51], s9 offen {pflags}")
    A(f"buffer_load_dword v{T+1}, v5, s[44:47], s9 offen {pflags}")
    A(f"buffer_load_dword v{T+2}, v6, s[56:59], s10 offen {pflags}")
    A(f"buffer_load_dword v{T+3}, v6, s[52:55], s10 offen {pflags}")
    for s in range(4):
        A(f"buffer_load_dwordx4 v[{Q+4*s}:{Q+4*s+3}], v7, s[60:63], s11 offen offset:{64*s}")
    def slot_jh(m): return (((m >> 2) << 1) | (m & 1), (m >> 1) & 1)
    def load(n):
        tile, m = n >> 3, n & 7
        j, hf = slot_jh(m)
        r = RING + 4 * n
        A(f"buffer_load_dwordx4 v[{r}:{r+3}], v{VOFF}, s[12:15], s{40 + 2*tile + (j >> 1)} offen offset:{(j & 1)*2048 + hf*256} {flags}")
    for n in range(16): load(n)
    A("s_lshl_b32 s32, s3, 13")
    A("v_lshrrev_b32 v8, 1, v4"); A("v_lshlrev_b32 v9, 2, v3"); A("v_xor_b32 v8, v8, v9"); A("v_lshlrev_b32 v8, 4, v8")
    A("v_lshl_add_u32 v8, v3, 10, v8"); A("v_and_b32 v9, 1, v4"); A("v_lshl_add_u32 v8, v9, 3, v8"); A("v_add_u32 v19, s32, v8")
    A("v_xor_b32 v8, v3, v4"); A("v_lshlrev_b32 v8, 4, v8"); A("v_lshl_add_u32 v8, v4, 8, v8"); A("v_add_u32 v8, s32, v8")
    for s in range(4): A(f"v_xor_b32 v{RA+s}, {s << 6}, v8")
    A(f"v_lshlrev_b32 v{KPA}, 4, v4"); A(f"v_add_u32 v{KPA}, {L_KP}, v{KPA}")
    A("s_lshl_b32 s33, s3, 10"); A(f"s_add_u32 s33, s33, {L_VP}")
    A(f"v_lshlrev_b32 v{VPA}, 4, v3"); A(f"v_add_u32 v{VPA}, s33, v{VPA}")
    A("s_lshl_b32 s34, s3, 12"); A(f"s_add_u32 s34, s34, {L_LG}")
    A(f"v_lshlrev_b32 v{LGA}, 4, v0"); A(f"v_add_u32 v{LGA}, s34, v{LGA}")
    A("s_lshl_b32 s35, s3, 10"); A(f"s_add_u32 s35, s35, {L_KP}")
    A(f"v_lshlrev_b32 v{T+8}, 3, v0"); A(f"v_add_u32 v{T+8}, s35, v{T+8}")
    A(f"v_lshrrev_b32 v{T+9}, 3, v0"); A(f"v_lshlrev_b32 v{T+9}, 6, v{T+9}")
    A(f"v_and_b32 v{T+10}, 1, v0"); A(f"v_lshl_add_u32 v{T+9}, v{T+10}, 5, v{T+9}")
    A(f"v_bfe_u32 v{T+10}, v0, 1, 2"); A(f"v_lshl_add_u32 v{T+9}, v{T+10}, 2, v{T+9}"); A(f"v_add_u32 v{T+9}, s33, v{T+9}")
    for m in range(8):
        j, hf = slot_jh(m)
        A(f"v_xor_b32 v{WA+m}, {(j ^ (8*hf)) << 4}, v19")
    A(f"v_mov_b32 v{VM}, 0xff800000"); A(f"v_mov_b32 v{VL}, 0")
    for i in range(32): A(f"v_mov_b32 v{ACC+i}, 0")
    A("s_waitcnt vmcnt(20)")
    A(f"v_lshlrev_b32 v{T+4}, 16, v{T+0}"); A(f"v_and_b32 v{T+5}, 0xffff0000, v{T+0}")
    A(f"v_xor_b32 v{T+4}, 0x80000000, v{T+4}"); A(f"v_xor_b32 v{T+5}, 0x80000000, v{T+5}")
    A(f"v_lshlrev_b32 v{T+6}, 16, v{T+1}"); A(f"v_and_b32 v{T+7}, 0xffff0000, v{T+1}")
    A(f"ds_write_b64 v{T+8}, v[{T+4}:{T+5}]"); A(f"ds_write_b64 v{T+8}, v[{T+6}:{T+7}] offset:512")
    A(f"v_lshlrev_b32 v{T+10}, 16, v{T+2}"); A(f"v_and_b32 v{T+11}, 0xffff0000, v{T+2}")
    A(f"v_xor_b32 v{T+10}, 0x80000000, v{T+10}"); A(f"v_xor_b32 v{T+11}, 0x80000000, v{T+11}")
    A(f"v_lshlrev_b32 v{T+12}, 16, v{T+3}"); A(f"v_and_b32 v{T+13}, 0xffff0000, v{T+3}")
    A(f"ds_write2_b32 v{T+9}, v{T+10}, v{T+11} offset0:0 offset1:4")
    A(f"ds_write2_b32 v{T+9}, v{T+12}, v{T+13} offset0:128 offset1:132")
    A("s_waitcnt lgkmcnt(0)")
    A("s_barrier")
    A(f"s_mov_b32 s36, {SCALE}"); A(f"s_mov_b32 s37, {LOG2E}")
    A("s_mov_b32 s38, 0")

    def dequant(r, t, zs, ss):
        pass

    def addz(t, zreg, bcast):
        if usepk:
            for h2 in range(2):
                if bcast:
                    b = zreg & ~1; hi = zreg & 1
                    A(f"v_pk_add_f32 v[{t+2*h2}:{t+2*h2+1}], v[{t+2*h2}:{t+2*h2+1}], v[{b}:{b+1}] op_sel:[0,{hi}] op_sel_hi:[1,{hi}]")
                else:
                    A(f"v_pk_add_f32 v[{t+2*h2}:{t+2*h2+1}], v[{t+2*h2}:{t+2*h2+1}], v[{zreg+2*h2}:{zreg+2*h2+1}]")
        else:
            for c in range(4): A(f"v_add_f32 v{t+c}, v{t+c}, v{zreg if bcast else zreg+c}")
    def muls(t, sreg, bcast):
        if usepk:
            for h2 in range(2):
                if bcast:
                    b = sreg & ~1; hi = sreg & 1
                    A(f"v_pk_mul_f32 v[{t+2*h2}:{t+2*h2+1}], v[{t+2*h2}:{t+2*h2+1}], v[{b}:{b+1}] op_sel:[0,{hi}] op_sel_hi:[1,{hi}]")
                else:
                    A(f"v_pk_mul_f32 v[{t+2*h2}:{t+2*h2+1}], v[{t+2*h2}:{t+2*h2+1}], v[{sreg+2*h2}:{sreg+2*h2+1}]")
        else:
            for c in range(4): A(f"v_mul_f32 v{t+c}, v{t+c}, v{sreg if bcast else sreg+c}")
    def round4(t, p):
        A(f"v_cvt_pk_bf16_f32 v{p}, v{t}, v{t+1}"); A(f"v_cvt_pk_bf16_f32 v{p+1}, v{t+2}, v{t+3}")
        A(f"v_lshlrev_b32 v{t}, 16, v{p}"); A(f"v_and_b32 v{t+1}, 0xffff0000, v{p}")
        A(f"v_lshlrev_b32 v{t+2}, 16, v{p+1}"); A(f"v_and_b32 v{t+3}, 0xffff0000, v{p+1}")
    def next_bases(loopname, last_iter, phase):
        A("s_add_u32 s38, s38, 1")
        A(f"s_add_u32 s40, s40, {c1g << 16}")
        A(f"s_cmp_lt_u32 s38, 4")
        if phase == "K":
            A("s_cselect_b32 s12, s16, s18"); A("s_cselect_b32 s13, s17, s19"); A("s_cselect_b32 s40, s40, s7")
        else:
            A("s_cselect_b32 s40, s40, 0x8000000")
        A("s_add_u32 s41, s40, 4096"); A(f"s_add_u32 s42, s40, {c0g << 16}"); A(f"s_add_u32 s43, s40, {(c0g << 16) + 4096}")
    def logits(tile):
        s = SAC + 4 * tile; t = T + 8; p = T + 12
        A(f"v_cvt_pk_bf16_f32 v{p}, v{s}, v{s+1}"); A(f"v_cvt_pk_bf16_f32 v{p+1}, v{s+2}, v{s+3}")
        A(f"v_lshlrev_b32 v{t}, 16, v{p}"); A(f"v_and_b32 v{t+1}, 0xffff0000, v{p}")
        A(f"v_lshlrev_b32 v{t+2}, 16, v{p+1}"); A(f"v_and_b32 v{t+3}, 0xffff0000, v{p+1}")
        for c in range(4): A(f"v_mul_f32 v{t+c}, s36, v{t+c}")
        A(f"v_cvt_pk_bf16_f32 v{p}, v{t}, v{t+1}"); A(f"v_cvt_pk_bf16_f32 v{p+1}, v{t+2}, v{t+3}")
        A(f"v_max3_f32 v{VM}, v{VM}, v{t}, v{t+1}"); A(f"v_max3_f32 v{VM}, v{VM}, v{t+2}, v{t+3}")
        A(f"ds_write_b64 v{LGA}, v[{p}:{p+1}] offset:{8*tile}")
    def smfma(tile):
        for s in range(4):
            a = OPN + 16 * tile + 4 * s
            c = "0" if s == 0 else f"v[{SAC+4*tile}:{SAC+4*tile+3}]"
            A(f"v_mfma_f32_16x16x32_bf16 v[{SAC+4*tile}:{SAC+4*tile+3}], v[{a}:{a+3}], v[{Q+4*s}:{Q+4*s+3}], {c}")
    A.label("L_k")
    for tile in range(2):
        for x in range(4):
            r = PRM + 16 * tile + 4 * x
            A(f"ds_read_b128 v[{r}:{r+3}], v{KPA} offset:{tile*1024 + (x >> 1)*512 + (x & 1)*256}")
    next_bases("k", 3, "K")
    for n in range(16):
        tile, m = n >> 3, n & 7
        j, hf = slot_jh(m)
        r = RING + 4 * n; t = T + 4 * (n & 1) ; p = T + 14
        A("s_waitcnt vmcnt(15)")
        for c in range(4): A(f"v_cvt_f32_i32 v{t+c}, v{r+c}")
        load(n)
        if n == 0: A("s_waitcnt lgkmcnt(0)")
        addz(t, PRM + 16 * tile + 4 * hf, False)
        round4(t, p)
        muls(t, PRM + 16 * tile + 8 + 4 * hf, False)
        A(f"v_cvt_pk_bf16_f32 v{t}, v{t}, v{t+1}"); A(f"v_cvt_pk_bf16_f32 v{t+1}, v{t+2}, v{t+3}")
        A(f"ds_write_b64 v{WA+m}, v[{t}:{t+1}] offset:{tile*4096 + j*256}")
        if m == 7:
            for s in range(4):
                a = OPN + 16 * tile + 4 * s
                A(f"ds_read_b128 v[{a}:{a+3}], v{RA+s} offset:{tile*4096}")
        if n == 9:
            A("s_waitcnt lgkmcnt(2)")
            smfma(0)
        if n == 11:
            logits(0)
    A("s_waitcnt lgkmcnt(0)")
    smfma(1)
    A(f"v_add_u32 v{KPA}, 2048, v{KPA}")
    A("s_nop 7")
    logits(1)
    A(f"v_add_u32 v{LGA}, 1024, v{LGA}")
    A("s_cmp_lt_u32 s38, 4")
    A("s_cbranch_scc1 L_k")
    A(f"v_subrev_u32 v{LGA}, 4096, v{LGA}")
    A(f"v_mov_b32 v{T}, v{VM}"); A("s_nop 1"); A(f"v_permlane32_swap_b32 v{T}, v{VM}"); A(f"v_max_f32 v{VM}, v{VM}, v{T}")
    A(f"v_mov_b32 v{T}, v{VM}"); A("s_nop 1"); A(f"v_permlane16_swap_b32 v{T}, v{VM}"); A(f"v_max_f32 v{VM}, v{VM}, v{T}")
    A(f"v_cvt_pk_bf16_f32 v{VM}, v{VM}, v{VM}"); A(f"v_and_b32 v{VM}, 0xffff0000, v{VM}")
    A(f"v_mul_f32 v{VX}, s37, v{VM}")
    A("s_mov_b32 s38, 0")
    A.label("L_v")
    PP = SAC; Y = SAC + 4
    A(f"ds_read_b128 v[{Y}:{Y+3}], v{LGA}")
    for tile in range(2):
        for x in range(2):
            r = PRM + 8 * tile + 4 * x
            A(f"ds_read_b128 v[{r}:{r+3}], v{VPA} offset:{tile*64 + x*512}")
    next_bases("v", 3, "V")
    A("s_waitcnt lgkmcnt(4)")
    E = PRM + 16
    for k in range(4):
        A(f"v_lshlrev_b32 v{E+2*k}, 16, v{Y+k}"); A(f"v_and_b32 v{E+2*k+1}, 0xffff0000, v{Y+k}")
    for k in range(8): A(f"v_fma_f32 v{E+k}, v{E+k}, s37, -v{VX}")
    for k in range(8): A(f"v_exp_f32 v{E+k}, v{E+k}")
    A("s_nop 0")
    for k in range(4): A(f"v_cvt_pk_bf16_f32 v{PP+k}, v{E+2*k}, v{E+2*k+1}")
    for k in range(4): A(f"v_add_f32 v{E+2*k}, v{E+2*k}, v{E+2*k+1}")
    A(f"v_add_f32 v{E}, v{E}, v{E+2}"); A(f"v_add_f32 v{E+4}, v{E+4}, v{E+6}"); A(f"v_add_f32 v{E}, v{E}, v{E+4}"); A(f"v_add_f32 v{VL}, v{VL}, v{E}")
    for n in range(16):
        tile, m = n >> 3, n & 7
        j, hf = slot_jh(m)
        r = RING + 4 * n; t = T + 4 * (n & 1); p = T + 14
        A("s_waitcnt vmcnt(15)")
        for c in range(4): A(f"v_cvt_f32_i32 v{t+c}, v{r+c}")
        load(n)
        if n == 0: A("s_waitcnt lgkmcnt(0)")
        addz(t, PRM + 8 * tile + j, True)
        round4(t, p)
        muls(t, PRM + 8 * tile + 4 + j, True)
        if n & 1:
            for c in range(4):
                A(f"v_cvt_pk_bf16_f32 v{OPN + 16*hf + 4*c + 2*tile + (j >> 1)}, v{T+c}, v{T+4+c}")
        if n == 13:
            A("s_nop 1")
            for c in range(4):
                a = OPN + 4 * c; d = ACC + 4 * c
                A(f"v_mfma_f32_16x16x32_bf16 v[{d}:{d+3}], v[{a}:{a+3}], v[{PP}:{PP+3}], v[{d}:{d+3}]")
    A("s_nop 1")
    for c in range(4):
        a = OPN + 16 + 4 * c; d = ACC + 16 + 4 * c
        A(f"v_mfma_f32_16x16x32_bf16 v[{d}:{d+3}], v[{a}:{a+3}], v[{PP}:{PP+3}], v[{d}:{d+3}]")
    A(f"v_add_u32 v{LGA}, 1024, v{LGA}"); A(f"v_add_u32 v{VPA}, 128, v{VPA}")
    A("s_cmp_lt_u32 s38, 4")
    A("s_cbranch_scc1 L_v")
    A(f"v_mov_b32 v{T}, v{VL}"); A("s_nop 1"); A(f"v_permlane32_swap_b32 v{T}, v{VL}"); A(f"v_add_f32 v{VL}, v{VL}, v{T}")
    A(f"v_mov_b32 v{T}, v{VL}"); A("s_nop 1"); A(f"v_permlane16_swap_b32 v{T}, v{VL}"); A(f"v_add_f32 v{VL}, v{VL}, v{T}")
    A("v_and_b32 v4, 15, v0"); A("v_lshrrev_b32 v3, 4, v0")
    A(f"v_mul_u32_u24 v5, {RSTR}, v4"); A("v_lshl_add_u32 v5, v3, 6, v5"); A("v_add_u32 v5, s32, v5")
    A("v_lshlrev_b32 v6, 6, v4"); A("s_lshl_b32 s33, s3, 3"); A(f"s_add_u32 s33, s33, {L_ML}"); A("v_add_u32 v6, s33, v6")
    A("s_mov_b32 exec_lo, 0x00ff00ff"); A("s_mov_b32 exec_hi, 0x00ff00ff")
    A("s_nop 4")
    for hf in range(2):
        for c in range(4):
            d = ACC + 16 * hf + 4 * c
            A(f"ds_write_b128 v5, v[{d}:{d+3}] offset:{hf*256 + c*16}")
    A("s_mov_b32 exec_lo, 0xff"); A("s_mov_b32 exec_hi, 0")
    A(f"ds_write_b64 v6, v[{VM}:{VL}]")
    A("s_mov_b64 exec, -1")
    A("s_waitcnt lgkmcnt(0)")
    A("s_barrier")
    A("s_cmp_ge_u32 s3, 4"); A("s_cbranch_scc1 L_fin")
    A("s_lshl_b32 s33, s3, 1"); A("v_lshrrev_b32 v3, 5, v0"); A("v_add_u32 v3, s33, v3")
    A("v_and_b32 v4, 31, v0")
    A(f"v_mul_u32_u24 v5, {RSTR}, v3"); A("v_lshl_add_u32 v5, v4, 4, v5")
    A("v_lshlrev_b32 v6, 6, v3"); A(f"v_add_u32 v6, {L_ML}, v6")
    for k in range(4): A(f"ds_read_b128 v[{20+4*k}:{23+4*k}], v6 offset:{16*k}")
    for w in range(8): A(f"ds_read_b128 v[{40+4*w}:{43+4*w}], v5 offset:{w*8192}")
    srd(A, 44, 30, 0x200000)
    A("s_lshl_b32 s33, s2, 12"); A("v_lshlrev_b32 v7, 9, v3"); A("v_lshl_add_u32 v7, v4, 4, v7")
    A("s_lshl_b32 s34, s4, 12"); A("s_and_b32 s35, s2, 63"); A("s_lshl_b32 s35, s35, 3"); A("s_add_u32 s34, s34, s35"); A("s_add_u32 s34, s34, 0x100000")
    A("v_lshlrev_b32 v8, 9, v3")
    A("s_waitcnt lgkmcnt(8)")
    A("v_max3_f32 v9, v20, v22, v24"); A("v_max3_f32 v9, v9, v26, v28"); A("v_max3_f32 v9, v9, v30, v32"); A("v_max_f32 v9, v9, v34")
    for w in range(8): A(f"v_sub_f32 v{20+2*w}, v{20+2*w}, v9")
    for w in range(8): A(f"v_mul_f32 v{20+2*w}, s37, v{20+2*w}")
    for w in range(8): A(f"v_exp_f32 v{20+2*w}, v{20+2*w}")
    A("s_nop 0")
    A("v_mul_f32 v10, v20, v21")
    for w in range(1, 8): A(f"v_fmac_f32 v10, v{20+2*w}, v{21+2*w}")
    A("s_waitcnt lgkmcnt(0)")
    for c in range(4): A(f"v_mul_f32 v{12+c}, v20, v{40+c}")
    for w in range(1, 8):
        for c in range(4): A(f"v_fmac_f32 v{12+c}, v{20+2*w}, v{40+4*w+c}")
    A("buffer_store_dwordx4 v[12:15], v7, s[44:47], s33 offen")
    A("v_cmp_eq_u32 vcc, 0, v4")
    A("s_and_saveexec_b64 s[48:49], vcc")
    A("v_mov_b32 v16, v9"); A("v_mov_b32 v17, v10")
    A("buffer_store_dwordx2 v[16:17], v8, s[44:47], s34 offen")
    A.label("L_fin")
    if stamp:
        A("s_mov_b64 exec, -1")
        srd(A, 44, 30, 0x10000000)
        A("s_memrealtime s[92:93]"); A("s_getreg_b32 s94, hwreg(HW_REG_XCC_ID)"); A("s_waitcnt lgkmcnt(0)")
        A("v_mov_b32 v8, s90"); A("v_mov_b32 v9, s94"); A("v_mov_b32 v10, s92"); A("v_mov_b32 v11, s93")
        A("s_lshl_b32 s95, s2, 3"); A("s_add_u32 s95, s95, s3"); A("s_lshl_b32 s95, s95, 4"); A("s_add_u32 s95, s95, 0x8000000")
        A("v_mov_b32 v5, s95")
        A("buffer_store_dwordx4 v[8:11], v5, s[44:47], 0 offen")
    A.label("L_done")
    A("s_endpgm")
    A.raw(f".globl {K2}"); A.raw(".p2align 8"); A.raw(f".type {K2},@function"); A.label(K2)
    A("s_cmp_ge_u32 s2, 128"); A("s_cbranch_scc1 L2_done")
    A("s_load_dwordx2 s[4:5], s[0:1], 72"); A("s_load_dwordx2 s[8:9], s[0:1], 56")
    A("s_lshr_b32 s12, s2, 2")
    A("s_and_b32 s13, s2, 3")
    A("v_lshrrev_b32 v1, 3, v0"); A("v_and_b32 v2, 7, v0")
    A("s_lshr_b32 s14, s12, 3"); A("s_lshl_b32 s14, s14, 18"); A("s_and_b32 s15, s12, 7"); A("s_lshl_b32 s15, s15, 9"); A("s_add_u32 s14, s14, s15")
    A("s_lshl_b32 s15, s13, 7"); A("s_add_u32 s14, s14, s15")
    A("v_lshlrev_b32 v3, 15, v1"); A("v_lshl_add_u32 v3, v2, 4, v3")
    A("s_lshl_b32 s16, s12, 9"); A("s_add_u32 s16, s16, 0x100000"); A("v_lshlrev_b32 v4, 6, v1")
    A(f"s_mov_b32 s17, {LOG2E}")
    A("s_waitcnt lgkmcnt(0)")
    A("s_mov_b32 s6, 0x200000"); A("s_mov_b32 s7, 0x20000"); A("s_mov_b32 s10, 8192"); A("s_mov_b32 s11, 0x20000")
    for k in range(4): A(f"buffer_load_dwordx4 v[{8+4*k}:{11+4*k}], v4, s[4:7], s16 offen offset:{16*k}")
    for i in range(8):
        A(f"buffer_load_dwordx4 v[{24+4*i}:{27+4*i}], v3, s[4:7], s14 offen")
        if i < 7: A("s_add_u32 s14, s14, 4096")
    A("s_lshl_b32 s18, s13, 3"); A("v_add_u32 v5, s18, v2"); A("v_lshrrev_b32 v6, 2, v5"); A("v_and_b32 v5, 3, v5")
    A("v_lshl_add_u32 v5, v6, 4, v5"); A("v_lshlrev_b32 v5, 1, v5"); A("s_lshl_b32 s18, s12, 8")
    A("s_waitcnt vmcnt(8)")
    A("v_max3_f32 v6, v8, v10, v12"); A("v_max3_f32 v6, v6, v14, v16"); A("v_max3_f32 v6, v6, v18, v20"); A("v_max_f32 v6, v6, v22")
    def xred(v, op, tmp):
        A("s_nop 1")
        A(f"{op}_dpp v{v}, v{v}, v{v} row_ror:8 row_mask:0xf bank_mask:0xf")
        A(f"v_mov_b32 v{tmp}, v{v}"); A("s_nop 1"); A(f"v_permlane16_swap_b32 v{tmp}, v{v}"); A(f"{op} v{v}, v{v}, v{tmp}")
        A(f"v_mov_b32 v{tmp}, v{v}"); A("s_nop 1"); A(f"v_permlane32_swap_b32 v{tmp}, v{v}"); A(f"{op} v{v}, v{v}, v{tmp}")
    xred(6, "v_max_f32", 7)
    for i in range(8): A(f"v_sub_f32 v{8+2*i}, v{8+2*i}, v6")
    for i in range(8): A(f"v_mul_f32 v{8+2*i}, s17, v{8+2*i}")
    for i in range(8): A(f"v_exp_f32 v{8+2*i}, v{8+2*i}")
    A("s_nop 0")
    A("v_mul_f32 v60, v8, v9")
    for i in range(1, 8): A(f"v_fmac_f32 v60, v{8+2*i}, v{9+2*i}")
    xred(60, "v_add_f32", 7)
    A("v_rcp_f32 v60, v60")
    for i in range(8):
        A(f"s_waitcnt vmcnt({7-i})")
        for c in range(4):
            if i == 0: A(f"v_mul_f32 v{56+c}, v8, v{24+c}")
            else: A(f"v_fmac_f32 v{56+c}, v{8+2*i}, v{24+4*i+c}")
    for c in range(4): xred(56 + c, "v_add_f32", 7)
    for c in range(4): A(f"v_mul_f32 v{56+c}, v{56+c}, v60")
    A("v_cvt_pk_bf16_f32 v56, v56, v57"); A("v_cvt_pk_bf16_f32 v58, v58, v59")
    A("s_mov_b64 exec, 0xff")
    A("buffer_store_short v56, v5, s[8:11], s18 offen")
    A("buffer_store_short_d16_hi v56, v5, s[8:11], s18 offen offset:8")
    A("buffer_store_short v58, v5, s[8:11], s18 offen offset:16")
    A("buffer_store_short_d16_hi v58, v5, s[8:11], s18 offen offset:24")
    A.label("L2_done")
    A("s_endpgm")
    kd(A, K1, vgpr); kd(A, K2, 64, 32)
    return A.text()

if __name__ == "__main__":
    import argparse
    ap = argparse.ArgumentParser()
    ap.add_argument("-o", default="k.s"); ap.add_argument("--stamp", action="store_true"); ap.add_argument("--nopk", action="store_true")
    ap.add_argument("--gbits", default="B0 B1 B2 B3 B4 B5 T0 T1 T2")
    a = ap.parse_args()
    open(a.o, "w").write(gen(gbits=a.gbits, stamp=a.stamp, usepk=not a.nopk))
```
